```python
import torch

def _softmax(x, axis=-1):
    return torch.softmax(x, dim=axis)
def _gelu(x):
    return torch.nn.functional.gelu(x, approximate="tanh")
def _silu(x):
    return torch.nn.functional.silu(x)
def _sigmoid(x):
    return torch.sigmoid(x)
def _layernorm(x, axis=-1, eps=1e-5):
    m = x.mean(dim=axis, keepdim=True)
    v = x.var(dim=axis, keepdim=True, unbiased=False)
    return (x - m) / torch.sqrt(v + eps)
def _scatter_add(tgt, idx, src, axis=0):
    return tgt.clone().index_add_(axis, idx, src)
def _segment_sum(src, seg, n):
    out = torch.zeros((n,) + src.shape[1:], dtype=src.dtype)
    return out.index_add_(0, seg, src)
def _pad(x, pw):
    flat = tuple(v for pair in reversed(pw) for v in pair)
    return torch.nn.functional.pad(x, flat)

kernel_name = 'standalone__groupnorm__prompt'

def setup_inputs():

    _w = (lambda a: (lambda t: t.to(torch.bfloat16) if t.is_floating_point() else t)(torch.as_tensor(a)))
    B = 2
    G = 32
    cpg = max(1, 576 // G)
    C = G * cpg
    H, W = 32, 2048
    return {
        "x": _w(abs((lambda *s: torch.randn(*s, dtype=torch.bfloat16) * 0.05)(B, C, H, W))),
        "g": _w((lambda *s: torch.randn(*s, dtype=torch.bfloat16) * 0.05)(C) + 1.0),
        "b": _w((lambda *s: torch.randn(*s, dtype=torch.bfloat16) * 0.4)(C)),
    }

def reference(x, g, b):
    G = 32
    B, C, H, W = x.shape[0], x.shape[1], x.shape[2], x.shape[3]
    xr = x.reshape(B, G, C // G, H, W)
    mu = xr.mean(axis=(2, 3, 4), keepdims=True)
    var = ((xr - mu) ** 2).mean(axis=(2, 3, 4), keepdims=True)
    xn = (xr - mu) / torch.sqrt(var + 1e-5)
    xn = xn.reshape(B, C, H, W)
    return xn * g[None, :, None, None] + b[None, :, None, None]
```

```python
import argparse, sys

NAME = "standalone__groupnorm__prompt_kernel"
GRP_BYTES = 18 * 65536 * 2
CH_BYTES = 65536 * 2
HALF_BYTES = 32 * GRP_BYTES
X_BYTES = 2 * HALF_BYTES
NELEM = 18 * 65536

HEADER = """; Kernarg layout for this problem (48 bytes, ptrs only, base s[0:1]):
; Override launch geometry by editing the next line (default: block=256,
"""


class Gen:
    def __init__(self, a):
        self.a = a
        self.L = []
        self.vm = []
        self.lab = 0

    def e(self, s):
        self.L.append("    " + s)

    def c(self, s):
        self.L.append("    ; " + s)

    def label(self, s):
        self.L.append(s + ":")

    def newlab(self, p):
        self.lab += 1
        return "L_%s_%d" % (p, self.lab)

    def vm_issue(self, name):
        self.vm.append(name)

    def vm_wait(self, name):
        if name not in self.vm:
            return
        idx = len(self.vm) - 1 - self.vm[::-1].index(name)
        n = len(self.vm) - 1 - idx
        assert n <= 63
        self.e("s_waitcnt vmcnt(%d)" % n)
        self.vm = self.vm[idx + 1:]

    def vm_room(self):
        if len(self.vm) >= 60:
            keep = 40
            self.e("s_waitcnt vmcnt(%d)" % keep)
            self.vm = self.vm[len(self.vm) - keep:]


def stamp(g, slot):
    if not g.a.stamps:
        return
    g.e("s_memrealtime s[60:61]")
    g.e("s_waitcnt lgkmcnt(0)")
    g.e("v_mov_b32 v36, s60")
    g.e("v_mov_b32 v37, s61")
    g.e("v_mov_b32 v38, 0")
    g.e("s_add_u32 s62, s63, %d" % (slot * 8))
    g.e("s_mov_b64 s[58:59], exec")
    g.e("s_mov_b64 exec, 1")
    g.e("buffer_store_dwordx2 v[36:37], v38, s[12:15], s62 offen")
    g.vm_issue("stamp")
    g.e("s_mov_b64 exec, s[58:59]")


def build(a):
    g = Gen(a)
    e = g.e
    NV = a.nvrows
    DATA0 = 256 - 4 * NV
    assert DATA0 >= 40
    NL = 72 - NV
    lds_per_wave = NL * 1024
    lds_total = lds_per_wave * 8
    ldf = a.ldflags
    stf = a.stflags

    def rowreg(i):
        return DATA0 + 4 * i

    out = []
    out.append(HEADER.rstrip("\n"))
    out.append("; @launch grid=(256,1,1) block=(512,1,1) lds=%d" % lds_total)
    out.append('.amdgcn_target "amdgcn-amd-amdhsa--gfx950"')
    out.append(".text")
    out.append(".globl %s" % NAME)
    out.append(".p2align 8")
    out.append(".type %s,@function" % NAME)
    out.append("%s:" % NAME)

    e("s_cmp_ge_u32 s2, 256")
    e("s_cbranch_scc1 L_end")
    e("s_load_dwordx4 s[44:47], s[0:1], 0")
    e("s_load_dwordx4 s[48:51], s[0:1], 16")
    e("s_load_dwordx2 s[52:53], s[0:1], 40")
    e("v_lshrrev_b32 v2, 6, v0")
    e("v_and_b32 v1, 63, v0")
    e("v_readfirstlane_b32 s26, v2")
    if a.teammap == 0:
        e("s_lshr_b32 s24, s2, 3")
        e("s_and_b32 s25, s2, 7")
    else:
        e("s_and_b32 s24, s2, 7")
        e("s_lshl_b32 s24, s24, 2")
        e("s_lshr_b32 s25, s2, 6")
        e("s_add_u32 s24, s24, s25")
        e("s_lshr_b32 s25, s2, 3")
        e("s_and_b32 s25, s25, 7")
    e("v_lshlrev_b32 v3, 1, v1")
    e("v_lshlrev_b32 v1, 4, v1")
    e("s_mul_i32 s28, s24, %d" % GRP_BYTES)
    e("s_add_u32 s29, s28, %d" % HALF_BYTES)
    if a.rowmap == 0:
        e("s_lshl_b32 s40, s26, 11")
    else:
        e("s_lshl_b32 s40, s26, 10")
    e("s_lshl_b32 s41, s25, 14")
    e("s_add_u32 s40, s40, s41")
    e("v_add_u32 v0, s40, v1")
    e("s_mul_i32 s43, s26, %d" % lds_per_wave)
    e("v_add_u32 v2, s43, v1")
    e("s_mul_i32 s41, s24, 36")
    e("s_lshl_b32 s54, s24, 7")
    e("s_lshl_b32 s55, s24, 11")
    e("s_add_u32 s55, s55, 4096")
    e("s_lshl_b32 s56, s25, 3")
    e("s_add_u32 s56, s56, s26")
    e("s_lshl_b32 s56, s56, 4")
    e("s_add_u32 s56, s56, s55")
    e("s_mov_b32 s42, 0xffff0000")
    if a.stamps:
        e("s_lshl_b32 s63, s2, 3")
        e("s_add_u32 s63, s63, s26")
        e("s_lshl_b32 s63, s63, 7")
        e("s_add_u32 s63, s63, 0x100000")
    e("s_waitcnt lgkmcnt(0)")
    e("s_mov_b32 s4, s44")
    e("s_and_b32 s5, s45, 0xffff")
    e("s_mov_b32 s6, %d" % X_BYTES)
    e("s_mov_b32 s7, 0x20000")
    e("s_mov_b32 s12, s52")
    e("s_and_b32 s13, s53, 0xffff")
    e("s_mov_b32 s14, %d" % (0x200000 if a.stamps else 4096 + 64 * 1024))
    e("s_mov_b32 s15, 0x20000")
    e("buffer_load_dword v32, off, s[12:15], s54 sc1")
    g.vm_issue("epoch")
    e("s_mov_b32 s16, s46")
    e("s_and_b32 s17, s47, 0xffff")
    e("s_mov_b32 s18, 1152")
    e("s_mov_b32 s19, 0x20000")
    e("s_mov_b32 s20, s48")
    e("s_and_b32 s21, s49, 0xffff")
    e("s_mov_b32 s22, 1152")
    e("s_mov_b32 s23, 0x20000")
    e("s_mov_b32 s27, s28")

    state = {"next": 0}

    def issue_row():
        i = state["next"]
        if i >= 72:
            return
        state["next"] += 1
        q = i & 1
        if q == 0 and i > 0:
            if i == 36:
                e("s_mov_b32 s27, s29")
            else:
                e("s_add_u32 s27, s27, %d" % CH_BYTES)
        off = q * (1024 if a.rowmap == 0 else 0)
        soff = "s27"
        if a.rowmap == 1 and q == 1:
            e("s_add_u32 s57, s27, 8192")
            soff = "s57"
        offs = (" offset:%d" % off) if off else ""
        if i < NV:
            r = rowreg(i)
            e("buffer_load_dwordx4 v[%d:%d], v0, s[4:7], %s offen%s%s" % (r, r + 3, soff, offs, ldf))
        else:
            k = i - NV
            e("s_add_u32 m0, s43, %d" % (k * 1024 - off))
            e("s_nop 0")
            e("buffer_load_dwordx4 v0, s[4:7], %s offen%s%s lds" % (soff, offs, ldf))
        g.vm_issue("row%d" % i)

    issue_row()
    issue_row()
    e("s_load_dword s30, s[44:45], s28")
    e("s_load_dword s32, s[44:45], s29")
    e("buffer_load_ushort v4, v3, s[16:19], s41 offen")
    g.vm_issue("gamma")
    e("buffer_load_ushort v5, v3, s[20:23], s41 offen")
    g.vm_issue("beta")
    e("s_mov_b32 s8, s50")
    e("s_and_b32 s9, s51, 0xffff")
    e("s_mov_b32 s10, %d" % X_BYTES)
    e("s_mov_b32 s11, 0x20000")
    while state["next"] < a.D:
        issue_row()
    for r in (8, 9, 10, 11, 12, 13, 14, 15):
        e("v_mov_b32 v%d, 0" % r)
    stamp(g, 0)
    g.vm_wait("epoch")
    e("v_readfirstlane_b32 s34, v32")
    e("s_waitcnt lgkmcnt(0)")
    e("s_lshl_b32 s30, s30, 16")
    e("s_lshl_b32 s32, s32, 16")
    e("s_add_u32 s34, s34, 1")

    def stats(src, K):
        for j in range(4):
            e("v_lshlrev_b32 v%d, 16, v%d" % (16 + 2 * j, src + j))
            e("v_and_b32 v%d, s42, v%d" % (17 + 2 * j, src + j))
        for j in range(4):
            t = 16 + 2 * j
            e("v_pk_add_f32 v[%d:%d], v[%d:%d], s[%d:%d] op_sel_hi:[1,0] neg_lo:[0,1] neg_hi:[0,1]" % (t, t + 1, t, t + 1, K, K + 1))
        for j in range(4):
            t = 16 + 2 * j
            a1 = 8 if j % 2 == 0 else 12
            a2 = 10 if j % 2 == 0 else 14
            e("v_pk_add_f32 v[%d:%d], v[%d:%d], v[%d:%d]" % (a1, a1 + 1, a1, a1 + 1, t, t + 1))
            e("v_pk_fma_f32 v[%d:%d], v[%d:%d], v[%d:%d], v[%d:%d]" % (a2, a2 + 1, t, t + 1, t, t + 1, a2, a2 + 1))

    def wave_reduce(r1, r2):
        for mod in ("row_shr:1 row_mask:0xf", "row_shr:2 row_mask:0xf", "row_shr:4 row_mask:0xf", "row_shr:8 row_mask:0xf",
                    "row_bcast:15 row_mask:0xa", "row_bcast:31 row_mask:0xc"):
            e("s_nop 1")
            e("v_add_f32_dpp v%d, v%d, v%d %s bank_mask:0xf" % (r1, r1, r1, mod))
            e("v_add_f32_dpp v%d, v%d, v%d %s bank_mask:0xf" % (r2, r2, r2, mod))

    def publish(h):
        g.c("publish partial sums of half %d" % h)
        e("v_pk_add_f32 v[8:9], v[8:9], v[12:13]")
        e("v_pk_add_f32 v[10:11], v[10:11], v[14:15]")
        e("v_add_f32 v36, v8, v9")
        e("v_add_f32 v38, v10, v11")
        wave_reduce(36, 38)
        e("v_mov_b32 v37, s34")
        e("v_mov_b32 v39, s34")
        e("s_lshl_b64 exec, 1, 63")
        if h == 1:
            e("s_add_u32 s56, s56, 1024")
        e("buffer_store_dwordx4 v[36:39], off, s[12:15], s56 sc1")
        g.vm_issue("pub%d" % h)
        e("s_mov_b64 exec, -1")
        for r in (8, 9, 10, 11, 12, 13, 14, 15):
            e("v_mov_b32 v%d, 0" % r)

    def poll_issue(h):
        g.c("poll partial sums of half %d" % h)
        if h == 1:
            e("s_add_u32 s55, s55, 1024")
        e("buffer_load_dwordx4 v[32:35], v1, s[12:15], s55 offen sc1")
        g.vm_issue("poll%d" % h)

    def poll_finish(h, K):
        g.vm_wait("poll%d" % h)
        lo = g.newlab("chk")
        ok = g.newlab("ok")
        e("s_mov_b32 s57, %d" % a.spin)
        g.label(lo)
        e("v_cmp_eq_u32 vcc, s34, v33")
        e("v_cmp_eq_u32 s[58:59], s34, v35")
        e("s_nop 1")
        e("s_and_b64 vcc, vcc, s[58:59]")
        e("s_cmp_eq_u64 vcc, -1")
        e("s_cbranch_scc1 %s" % ok)
        e("s_sub_u32 s57, s57, 1")
        e("s_cmp_eq_u32 s57, 0")
        e("s_cbranch_scc1 %s" % ok)
        e("s_sleep %d" % a.sleep)
        e("buffer_load_dwordx4 v[32:35], v1, s[12:15], s55 offen sc1")
        e("s_waitcnt vmcnt(0)")
        e("s_branch %s" % lo)
        g.label(ok)
        wave_reduce(32, 34)
        e("s_nop 1")
        e("v_readlane_b32 s58, v32, 63")
        e("v_readlane_b32 s59, v34, 63")
        e("s_mov_b32 s57, 0x%08x" % f32bits(1.0 / NELEM))
        e("v_mov_b32 v32, s58")
        e("v_mov_b32 v33, s59")
        e("v_mul_f32 v32, s57, v32")
        e("v_mul_f32 v33, s57, v33")
        e("v_fma_f32 v33, -v32, v32, v33")
        e("v_max_f32 v33, 0, v33")
        e("v_add_f32 v33, 0x%08x, v33" % f32bits(1e-5))
        e("v_rsq_f32 v33, v33")
        e("v_add_f32 v32, s%d, v32" % K)
        e("v_mul_f32 v6, v4, v33")
        e("v_fma_f32 v7, -v32, v6, v5")
        if h == 0:
            skip = g.newlab("noep")
            e("s_or_b32 s57, s25, s26")
            e("s_cmp_lg_u32 s57, 0")
            e("s_cbranch_scc1 %s" % skip)
            e("v_mov_b32 v33, s34")
            e("buffer_store_dword v33, off, s[12:15], s54 sc1")
            g.label(skip)

    def norm(src, dst, sc, sh):
        for j in range(4):
            e("v_lshlrev_b32 v%d, 16, v%d" % (16 + 2 * j, src + j))
            e("v_and_b32 v%d, s42, v%d" % (17 + 2 * j, src + j))
        for j in range(4):
            t = 16 + 2 * j
            e("v_pk_fma_f32 v[%d:%d], v[%d:%d], s[%d:%d], v[%d:%d] op_sel_hi:[1,0,0]" % (t, t + 1, t, t + 1, sc, sc + 1, sh, sh + 1))
        for j in range(4):
            t = 16 + 2 * j
            e("v_cvt_pk_bf16_f32 v%d, v%d, v%d" % (dst + j, t, t + 1))

    for i in range(72):
        h = i // 36
        K = 30 if h == 0 else 32
        g.vm_wait("row%d" % i)
        if i < NV:
            stats(rowreg(i), K)
        else:
            k = i - NV
            e("ds_read_b128 v[24:27], v2 offset:%d" % (k * 1024))
            e("s_waitcnt lgkmcnt(0)")
            stats(24, K)
        issue_row()
        if i == 0:
            pass
        if i == 2:
            e("v_lshlrev_b32 v4, 16, v4")
            e("v_lshlrev_b32 v5, 16, v5")
        if i == 35:
            publish(0)
        if i == a.pollA:
            poll_issue(0)
        if i == a.finA:
            poll_finish(0, 30)
        if i == 71:
            stamp(g, 1)
            publish(1)
    stamp(g, 2)

    e("s_mov_b32 s27, s28")
    for i in range(72):
        h = i // 36
        c = (i % 36) >> 1
        q = i & 1
        if q == 0:
            if i == 36:
                poll_finish(1, 32)
                stamp(g, 3)
                e("s_mov_b32 s27, s29")
            elif i > 0:
                e("s_add_u32 s27, s27, %d" % CH_BYTES)
            sc = 36 if c % 2 == 0 else 38
            sh = 28 if c % 2 == 0 else 30
            state["sc"], state["sh"] = sc, sh
            e("v_readlane_b32 s40, v7, %d" % c)
            e("v_readlane_b32 s%d, v6, %d" % (sc, c))
            e("s_nop 0")
            e("v_mov_b32 v%d, s40" % sh)
        sc, sh = state["sc"], state["sh"]
        off = q * (1024 if a.rowmap == 0 else 0)
        soff = "s27"
        if a.rowmap == 1 and q == 1:
            e("s_add_u32 s57, s27, 8192")
            soff = "s57"
        offs = (" offset:%d" % off) if off else ""
        if i < NV:
            r = rowreg(i)
            norm(r, r, sc, sh)
        else:
            k = i - NV
            r = 24
            e("ds_read_b128 v[24:27], v2 offset:%d" % (k * 1024))
            e("s_waitcnt lgkmcnt(0)")
            norm(24, 24, sc, sh)
        g.vm_room()
        e("buffer_store_dwordx4 v[%d:%d], v0, s[8:11], %s offen%s%s" % (r, r + 3, soff, offs, stf))
        g.vm_issue("st%d" % i)
        if i >= NV:
            e("s_nop 1")
        if i == a.pollB:
            poll_issue(1)
    if a.stamps:
        e("s_waitcnt vmcnt(0)")
        g.vm = []
        stamp(g, 4)
    g.label("L_end")
    e("s_endpgm")

    out += g.L
    out.append('.section .rodata,"a"')
    out.append(".p2align 6")
    out.append(".amdhsa_kernel %s" % NAME)
    out.append("  .amdhsa_next_free_vgpr 256")
    out.append("  .amdhsa_next_free_sgpr 72")
    out.append("  .amdhsa_accum_offset 256")
    out.append("  .amdhsa_group_segment_fixed_size 0")
    out.append("  .amdhsa_kernarg_size 48")
    out.append("  .amdhsa_user_sgpr_count 2")
    out.append("  .amdhsa_user_sgpr_kernarg_segment_ptr 1")
    out.append("  .amdhsa_system_sgpr_workgroup_id_x 1")
    out.append("  .amdhsa_float_denorm_mode_32 3")
    out.append(".end_amdhsa_kernel")
    return "\n".join(out) + "\n"


def f32bits(x):
    import struct
    return struct.unpack("<I", struct.pack("<f", x))[0]


if __name__ == "__main__":
    p = argparse.ArgumentParser()
    p.add_argument("-o", default="standalone__groupnorm__prompt.s")
    p.add_argument("--D", type=int, default=24)
    p.add_argument("--nvrows", type=int, default=54)
    p.add_argument("--ldflags", default=" nt")
    p.add_argument("--stflags", default=" nt")
    p.add_argument("--pollA", type=int, default=43)
    p.add_argument("--finA", type=int, default=68)
    p.add_argument("--pollB", type=int, default=16)
    p.add_argument("--teammap", type=int, default=0)
    p.add_argument("--rowmap", type=int, default=0)
    p.add_argument("--spin", type=int, default=20000)
    p.add_argument("--sleep", type=int, default=8)
    p.add_argument("--stamps", type=int, default=0)
    a = p.parse_args()
    open(a.o, "w").write(build(a))
```

```python
import argparse, sys

NAME = "standalone__groupnorm__prompt_kernel"
GRP_BYTES = 18 * 65536 * 2
CH_BYTES = 65536 * 2
HALF_BYTES = 32 * GRP_BYTES
X_BYTES = 2 * HALF_BYTES
NELEM = 18 * 65536

HEADER = """; Kernarg layout for this problem (48 bytes, ptrs only, base s[0:1]):
; Override launch geometry by editing the next line (default: block=256,
"""


class Gen:
    def __init__(self, a):
        self.a = a
        self.L = []
        self.vm = []
        self.lab = 0

    def e(self, s):
        self.L.append("    " + s)

    def c(self, s):
        self.L.append("    ; " + s)

    def label(self, s):
        self.L.append(s + ":")

    def newlab(self, p):
        self.lab += 1
        return "L_%s_%d" % (p, self.lab)

    def vm_issue(self, name):
        self.vm.append(name)

    def vm_wait(self, name):
        if name not in self.vm:
            return
        idx = len(self.vm) - 1 - self.vm[::-1].index(name)
        n = len(self.vm) - 1 - idx
        assert n <= 63
        self.e("s_waitcnt vmcnt(%d)" % n)
        self.vm = self.vm[idx + 1:]

    def vm_room(self):
        if len(self.vm) >= 60:
            keep = 40
            self.e("s_waitcnt vmcnt(%d)" % keep)
            self.vm = self.vm[len(self.vm) - keep:]


def stamp(g, slot):
    if not g.a.stamps:
        return
    g.e("s_memrealtime s[60:61]")
    g.e("s_waitcnt lgkmcnt(0)")
    g.e("v_mov_b32 v36, s60")
    g.e("v_mov_b32 v37, s61")
    g.e("v_mov_b32 v38, 0")
    g.e("s_add_u32 s62, s63, %d" % (slot * 8))
    g.e("s_mov_b64 s[58:59], exec")
    g.e("s_mov_b64 exec, 1")
    g.e("buffer_store_dwordx2 v[36:37], v38, s[12:15], s62 offen")
    g.vm_issue("stamp")
    g.e("s_mov_b64 exec, s[58:59]")


def build(a):
    g = Gen(a)
    e = g.e
    NV = a.nvrows
    DATA0 = 256 - 4 * NV
    assert DATA0 >= 40
    NL = 72 - NV
    lds_per_wave = NL * 1024
    lds_total = lds_per_wave * 8
    ldf = a.ldflags
    stf = a.stflags

    def rowreg(i):
        return DATA0 + 4 * i

    out = []
    out.append(HEADER.rstrip("\n"))
    out.append("; @launch grid=(256,1,1) block=(512,1,1) lds=%d" % lds_total)
    out.append('.amdgcn_target "amdgcn-amd-amdhsa--gfx950"')
    out.append(".text")
    out.append(".globl %s" % NAME)
    out.append(".p2align 8")
    out.append(".type %s,@function" % NAME)
    out.append("%s:" % NAME)

    e("s_cmp_ge_u32 s2, 256")
    e("s_cbranch_scc1 L_end")
    e("s_load_dwordx4 s[44:47], s[0:1], 0")
    e("s_load_dwordx4 s[48:51], s[0:1], 16")
    e("s_load_dwordx2 s[52:53], s[0:1], 40")
    e("v_lshrrev_b32 v2, 6, v0")
    e("v_and_b32 v1, 63, v0")
    e("v_readfirstlane_b32 s26, v2")
    if a.teammap == 0:
        e("s_lshr_b32 s24, s2, 3")
        e("s_and_b32 s25, s2, 7")
    else:
        e("s_and_b32 s24, s2, 7")
        e("s_lshl_b32 s24, s24, 2")
        e("s_lshr_b32 s25, s2, 6")
        e("s_add_u32 s24, s24, s25")
        e("s_lshr_b32 s25, s2, 3")
        e("s_and_b32 s25, s25, 7")
    e("v_lshlrev_b32 v3, 1, v1")
    e("v_lshlrev_b32 v1, 4, v1")
    e("s_mul_i32 s28, s24, %d" % GRP_BYTES)
    e("s_add_u32 s29, s28, %d" % HALF_BYTES)
    if a.rowmap == 0:
        e("s_lshl_b32 s40, s26, 11")
    else:
        e("s_lshl_b32 s40, s26, 10")
    e("s_lshl_b32 s41, s25, 14")
    e("s_add_u32 s40, s40, s41")
    e("v_add_u32 v0, s40, v1")
    e("s_mul_i32 s43, s26, %d" % lds_per_wave)
    e("v_add_u32 v2, s43, v1")
    e("s_mul_i32 s41, s24, 36")
    e("s_lshl_b32 s54, s24, 7")
    e("s_lshl_b32 s55, s24, 11")
    e("s_add_u32 s55, s55, 4096")
    e("s_lshl_b32 s56, s25, 3")
    e("s_add_u32 s56, s56, s26")
    e("s_lshl_b32 s56, s56, 4")
    e("s_add_u32 s56, s56, s55")
    e("s_mov_b32 s42, 0xffff0000")
    if a.stamps:
        e("s_lshl_b32 s63, s2, 3")
        e("s_add_u32 s63, s63, s26")
        e("s_lshl_b32 s63, s63, 7")
        e("s_add_u32 s63, s63, 0x100000")
    e("s_waitcnt lgkmcnt(0)")
    e("s_mov_b32 s4, s44")
    e("s_and_b32 s5, s45, 0xffff")
    e("s_mov_b32 s6, %d" % X_BYTES)
    e("s_mov_b32 s7, 0x20000")
    e("s_mov_b32 s12, s52")
    e("s_and_b32 s13, s53, 0xffff")
    e("s_mov_b32 s14, %d" % (0x200000 if a.stamps else 4096 + 64 * 1024))
    e("s_mov_b32 s15, 0x20000")
    e("buffer_load_dword v32, off, s[12:15], s54 sc1")
    g.vm_issue("epoch")
    e("s_mov_b32 s16, s46")
    e("s_and_b32 s17, s47, 0xffff")
    e("s_mov_b32 s18, 1152")
    e("s_mov_b32 s19, 0x20000")
    e("s_mov_b32 s20, s48")
    e("s_and_b32 s21, s49, 0xffff")
    e("s_mov_b32 s22, 1152")
    e("s_mov_b32 s23, 0x20000")
    e("s_mov_b32 s27, s28")

    state = {"next": 0}

    def issue_row():
        i = state["next"]
        if i >= 72:
            return
        state["next"] += 1
        q = i & 1
        if q == 0 and i > 0:
            if i == 36:
                e("s_mov_b32 s27, s29")
            else:
                e("s_add_u32 s27, s27, %d" % CH_BYTES)
        off = q * (1024 if a.rowmap == 0 else 0)
        soff = "s27"
        if a.rowmap == 1 and q == 1:
            e("s_add_u32 s57, s27, 8192")
            soff = "s57"
        offs = (" offset:%d" % off) if off else ""
        if i < NV:
            r = rowreg(i)
            e("buffer_load_dwordx4 v[%d:%d], v0, s[4:7], %s offen%s%s" % (r, r + 3, soff, offs, ldf))
        else:
            k = i - NV
            e("s_add_u32 m0, s43, %d" % (k * 1024 - off))
            e("s_nop 0")
            e("buffer_load_dwordx4 v0, s[4:7], %s offen%s%s lds" % (soff, offs, ldf))
        g.vm_issue("row%d" % i)

    issue_row()
    issue_row()
    e("s_load_dword s30, s[44:45], s28")
    e("s_load_dword s32, s[44:45], s29")
    e("buffer_load_ushort v4, v3, s[16:19], s41 offen")
    g.vm_issue("gamma")
    e("buffer_load_ushort v5, v3, s[20:23], s41 offen")
    g.vm_issue("beta")
    e("s_mov_b32 s8, s50")
    e("s_and_b32 s9, s51, 0xffff")
    e("s_mov_b32 s10, %d" % X_BYTES)
    e("s_mov_b32 s11, 0x20000")
    while state["next"] < a.D:
        issue_row()
    for r in (8, 9, 10, 11, 12, 13, 14, 15):
        e("v_mov_b32 v%d, 0" % r)
    stamp(g, 0)
    if a.stamps:
        e("s_getreg_b32 s60, hwreg(HW_REG_XCC_ID)")
        e("s_getreg_b32 s61, hwreg(HW_REG_HW_ID)")
        e("v_mov_b32 v36, s60")
        e("v_mov_b32 v37, s61")
        e("v_mov_b32 v38, 0")
        e("s_add_u32 s62, s63, %d" % (15 * 8))
        e("s_mov_b64 exec, 1")
        e("buffer_store_dwordx2 v[36:37], v38, s[12:15], s62 offen")
        g.vm_issue("stamp")
        e("s_mov_b64 exec, -1")
    g.vm_wait("epoch")
    e("v_readfirstlane_b32 s34, v32")
    e("s_waitcnt lgkmcnt(0)")
    e("s_lshl_b32 s30, s30, 16")
    e("s_lshl_b32 s32, s32, 16")
    e("s_add_u32 s34, s34, 1")

    def stats(src, K):
        for j in range(4):
            e("v_lshlrev_b32 v%d, 16, v%d" % (16 + 2 * j, src + j))
            e("v_and_b32 v%d, s42, v%d" % (17 + 2 * j, src + j))
        for j in range(4):
            t = 16 + 2 * j
            e("v_pk_add_f32 v[%d:%d], v[%d:%d], s[%d:%d] op_sel_hi:[1,0] neg_lo:[0,1] neg_hi:[0,1]" % (t, t + 1, t, t + 1, K, K + 1))
        for j in range(4):
            t = 16 + 2 * j
            a1 = 8 if j % 2 == 0 else 12
            a2 = 10 if j % 2 == 0 else 14
            e("v_pk_add_f32 v[%d:%d], v[%d:%d], v[%d:%d]" % (a1, a1 + 1, a1, a1 + 1, t, t + 1))
            e("v_pk_fma_f32 v[%d:%d], v[%d:%d], v[%d:%d], v[%d:%d]" % (a2, a2 + 1, t, t + 1, t, t + 1, a2, a2 + 1))

    def wave_reduce(r1, r2):
        for mod in ("row_shr:1 row_mask:0xf", "row_shr:2 row_mask:0xf", "row_shr:4 row_mask:0xf", "row_shr:8 row_mask:0xf",
                    "row_bcast:15 row_mask:0xa", "row_bcast:31 row_mask:0xc"):
            e("s_nop 1")
            e("v_add_f32_dpp v%d, v%d, v%d %s bank_mask:0xf" % (r1, r1, r1, mod))
            e("v_add_f32_dpp v%d, v%d, v%d %s bank_mask:0xf" % (r2, r2, r2, mod))

    def publish(h):
        g.c("publish partial sums of half %d" % h)
        e("v_pk_add_f32 v[8:9], v[8:9], v[12:13]")
        e("v_pk_add_f32 v[10:11], v[10:11], v[14:15]")
        e("v_add_f32 v36, v8, v9")
        e("v_add_f32 v38, v10, v11")
        wave_reduce(36, 38)
        e("v_mov_b32 v37, s34")
        e("v_mov_b32 v39, s34")
        e("s_lshl_b64 exec, 1, 63")
        if h == 1:
            e("s_add_u32 s56, s56, 1024")
        e("buffer_store_dwordx4 v[36:39], off, s[12:15], s56 sc1")
        g.vm_issue("pub%d" % h)
        e("s_mov_b64 exec, -1")
        for r in (8, 9, 10, 11, 12, 13, 14, 15):
            e("v_mov_b32 v%d, 0" % r)

    def poll_issue(h):
        g.c("poll partial sums of half %d" % h)
        if h == 1:
            e("s_add_u32 s55, s55, 1024")
        e("buffer_load_dwordx4 v[32:35], v1, s[12:15], s55 offen sc1")
        g.vm_issue("poll%d" % h)

    def poll_finish(h, K):
        g.vm_wait("poll%d" % h)
        lo = g.newlab("chk")
        ok = g.newlab("ok")
        e("s_mov_b32 s57, %d" % a.spin)
        g.label(lo)
        e("v_cmp_eq_u32 vcc, s34, v33")
        e("v_cmp_eq_u32 s[58:59], s34, v35")
        e("s_nop 1")
        e("s_and_b64 vcc, vcc, s[58:59]")
        e("s_cmp_eq_u64 vcc, -1")
        e("s_cbranch_scc1 %s" % ok)
        e("s_sub_u32 s57, s57, 1")
        e("s_cmp_eq_u32 s57, 0")
        e("s_cbranch_scc1 %s" % ok)
        e("s_sleep %d" % a.sleep)
        e("buffer_load_dwordx4 v[32:35], v1, s[12:15], s55 offen sc1")
        e("s_waitcnt vmcnt(0)")
        e("s_branch %s" % lo)
        g.label(ok)
        wave_reduce(32, 34)
        e("s_nop 1")
        e("v_readlane_b32 s58, v32, 63")
        e("v_readlane_b32 s59, v34, 63")
        e("s_mov_b32 s57, 0x%08x" % f32bits(1.0 / NELEM))
        e("v_mov_b32 v32, s58")
        e("v_mov_b32 v33, s59")
        e("v_mul_f32 v32, s57, v32")
        e("v_mul_f32 v33, s57, v33")
        e("v_fma_f32 v33, -v32, v32, v33")
        e("v_max_f32 v33, 0, v33")
        e("v_add_f32 v33, 0x%08x, v33" % f32bits(1e-5))
        e("v_rsq_f32 v33, v33")
        e("v_add_f32 v32, s%d, v32" % K)
        e("v_mul_f32 v6, v4, v33")
        e("v_fma_f32 v7, -v32, v6, v5")
        if h == 0:
            skip = g.newlab("noep")
            e("s_or_b32 s57, s25, s26")
            e("s_cmp_lg_u32 s57, 0")
            e("s_cbranch_scc1 %s" % skip)
            e("v_mov_b32 v33, s34")
            e("buffer_store_dword v33, off, s[12:15], s54 sc1")
            g.label(skip)

    def norm(src, dst, sc, sh):
        for j in range(4):
            e("v_lshlrev_b32 v%d, 16, v%d" % (16 + 2 * j, src + j))
            e("v_and_b32 v%d, s42, v%d" % (17 + 2 * j, src + j))
        for j in range(4):
            t = 16 + 2 * j
            e("v_pk_fma_f32 v[%d:%d], v[%d:%d], s[%d:%d], v[%d:%d] op_sel_hi:[1,0,0]" % (t, t + 1, t, t + 1, sc, sc + 1, sh, sh + 1))
        for j in range(4):
            t = 16 + 2 * j
            e("v_cvt_pk_bf16_f32 v%d, v%d, v%d" % (dst + j, t, t + 1))

    for i in range(72):
        h = i // 36
        K = 30 if h == 0 else 32
        g.vm_wait("row%d" % i)
        if i < NV:
            stats(rowreg(i), K)
        else:
            k = i - NV
            e("ds_read_b128 v[24:27], v2 offset:%d" % (k * 1024))
            e("s_waitcnt lgkmcnt(0)")
            stats(24, K)
        issue_row()
        if i == 0:
            pass
        if i == 2:
            e("v_lshlrev_b32 v4, 16, v4")
            e("v_lshlrev_b32 v5, 16, v5")
        if i == 35:
            publish(0)
        if i == a.pollA:
            poll_issue(0)
        if i == a.finA:
            poll_finish(0, 30)
        if i == 71:
            stamp(g, 1)
            publish(1)
    stamp(g, 2)

    e("s_mov_b32 s27, s28")
    for i in range(72):
        h = i // 36
        c = (i % 36) >> 1
        q = i & 1
        if q == 0:
            if i == 36:
                poll_finish(1, 32)
                stamp(g, 3)
                e("s_mov_b32 s27, s29")
            elif i > 0:
                e("s_add_u32 s27, s27, %d" % CH_BYTES)
            sc = 36 if c % 2 == 0 else 38
            sh = 28 if c % 2 == 0 else 30
            state["sc"], state["sh"] = sc, sh
            e("v_readlane_b32 s40, v7, %d" % c)
            e("v_readlane_b32 s%d, v6, %d" % (sc, c))
            e("s_nop 0")
            e("v_mov_b32 v%d, s40" % sh)
        sc, sh = state["sc"], state["sh"]
        off = q * (1024 if a.rowmap == 0 else 0)
        soff = "s27"
        if a.rowmap == 1 and q == 1:
            e("s_add_u32 s57, s27, 8192")
            soff = "s57"
        offs = (" offset:%d" % off) if off else ""
        if i < NV:
            r = rowreg(i)
            norm(r, r, sc, sh)
        else:
            k = i - NV
            r = 24
            e("ds_read_b128 v[24:27], v2 offset:%d" % (k * 1024))
            e("s_waitcnt lgkmcnt(0)")
            norm(24, 24, sc, sh)
        g.vm_room()
        e("buffer_store_dwordx4 v[%d:%d], v0, s[8:11], %s offen%s%s" % (r, r + 3, soff, offs, stf))
        g.vm_issue("st%d" % i)
        if i >= NV:
            e("s_nop 1")
        if i == a.pollB:
            poll_issue(1)
    if a.stamps:
        e("s_waitcnt vmcnt(0)")
        g.vm = []
        stamp(g, 4)
    g.label("L_end")
    e("s_endpgm")

    out += g.L
    out.append('.section .rodata,"a"')
    out.append(".p2align 6")
    out.append(".amdhsa_kernel %s" % NAME)
    out.append("  .amdhsa_next_free_vgpr 256")
    out.append("  .amdhsa_next_free_sgpr 72")
    out.append("  .amdhsa_accum_offset 256")
    out.append("  .amdhsa_group_segment_fixed_size 0")
    out.append("  .amdhsa_kernarg_size 48")
    out.append("  .amdhsa_user_sgpr_count 2")
    out.append("  .amdhsa_user_sgpr_kernarg_segment_ptr 1")
    out.append("  .amdhsa_system_sgpr_workgroup_id_x 1")
    out.append("  .amdhsa_float_denorm_mode_32 3")
    out.append(".end_amdhsa_kernel")
    return "\n".join(out) + "\n"


def f32bits(x):
    import struct
    return struct.unpack("<I", struct.pack("<f", x))[0]


if __name__ == "__main__":
    p = argparse.ArgumentParser()
    p.add_argument("-o", default="standalone__groupnorm__prompt.s")
    p.add_argument("--D", type=int, default=24)
    p.add_argument("--nvrows", type=int, default=54)
    p.add_argument("--ldflags", default=" nt")
    p.add_argument("--stflags", default=" nt")
    p.add_argument("--pollA", type=int, default=43)
    p.add_argument("--finA", type=int, default=68)
    p.add_argument("--pollB", type=int, default=16)
    p.add_argument("--teammap", type=int, default=0)
    p.add_argument("--rowmap", type=int, default=0)
    p.add_argument("--spin", type=int, default=20000)
    p.add_argument("--sleep", type=int, default=8)
    p.add_argument("--stamps", type=int, default=0)
    a = p.parse_args()
    open(a.o, "w").write(build(a))
```

```python
import argparse, struct
from gen import HEADER, NAME, GRP_BYTES, CH_BYTES, X_BYTES, NELEM, Gen, f32bits


def build(a):
    g = Gen(a)
    e = g.e
    TH = a.threads
    NW = TH // 64
    NR = a.nr
    ROWB = TH * 16
    rows_per_group = GRP_BYTES // ROWB
    assert rows_per_group % NR == 0
    T = rows_per_group // NR
    assert T <= 64
    NWG = 64 * T
    rpc_log = (CH_BYTES // ROWB).bit_length() - 1
    DATA0 = 24
    NVGPR = DATA0 + 4 * NR
    ldf, stf = a.ldflags, a.stflags
    GRAN0 = 8192
    WS_BYTES = GRAN0 + 64 * 1024
    LDS_BYTES = 1024
    magicT = (1 << 32) // T + 1

    def rowreg(i):
        return DATA0 + 4 * i

    out = [HEADER.rstrip("\n"),
           "; @launch grid=(%d,1,1) block=(%d,1,1) lds=%d" % (NWG, TH, LDS_BYTES),
           '.amdgcn_target "amdgcn-amd-amdhsa--gfx950"', ".text", ".globl %s" % NAME, ".p2align 8",
           ".type %s,@function" % NAME, "%s:" % NAME]

    e("s_cmp_ge_u32 s2, %d" % NWG)
    e("s_cbranch_scc1 L_end")
    e("s_load_dwordx4 s[44:47], s[0:1], 0")
    e("s_load_dwordx4 s[48:51], s[0:1], 16")
    e("s_load_dwordx2 s[52:53], s[0:1], 40")
    e("v_lshrrev_b32 v1, 6, v0")
    e("v_lshlrev_b32 v0, 4, v0")
    e("v_readfirstlane_b32 s26, v1")
    if a.remap:
        e("s_and_b32 s3, s2, 7")
        e("s_lshr_b32 s25, s2, 3")
        e("s_mul_hi_u32 s24, s25, %d" % magicT)
        e("s_mul_i32 s40, s24, %d" % T)
        e("s_sub_u32 s25, s25, s40")
        e("s_lshl_b32 s24, s24, 3")
        e("s_add_u32 s24, s24, s3")
        e("s_mul_i32 s40, s24, %d" % T)
        e("s_add_u32 s3, s40, s25")
    else:
        if T & (T - 1) == 0:
            e("s_lshr_b32 s24, s2, %d" % (T.bit_length() - 1))
            e("s_and_b32 s25, s2, %d" % (T - 1))
        else:
            e("s_mul_hi_u32 s24, s2, %d" % magicT)
            e("s_mul_i32 s40, s24, %d" % T)
            e("s_sub_u32 s25, s2, s40")
        e("s_mov_b32 s3, s2")
    e("s_mul_i32 s27, s3, %d" % (NR * ROWB))
    e("s_mul_i32 s28, s24, %d" % GRP_BYTES)
    e("s_mul_i32 s29, s25, %d" % NR)
    e("s_mov_b32 s42, 0xffff0000")
    e("s_lshl_b32 s54, s24, 7")
    e("s_lshl_b32 s55, s24, 10")
    e("s_add_u32 s55, s55, %d" % GRAN0)
    e("s_lshl_b32 s56, s25, 4")
    e("s_add_u32 s56, s56, s55")
    if a.stamps:
        e("s_mul_i32 s63, s2, %d" % NW)
        e("s_add_u32 s63, s63, s26")
        e("s_lshl_b32 s63, s63, 7")
        e("s_add_u32 s63, s63, 0x100000")
    e("s_waitcnt lgkmcnt(0)")
    e("s_mov_b32 s4, s44")
    e("s_and_b32 s5, s45, 0xffff")
    e("s_mov_b32 s6, %d" % X_BYTES)
    e("s_mov_b32 s7, 0x20000")
    e("s_load_dword s30, s[44:45], s28")
    e("s_mov_b32 s12, s52")
    e("s_and_b32 s13, s53, 0xffff")
    e("s_mov_b32 s14, %d" % (0x4000000 if a.stamps else WS_BYTES))
    e("s_mov_b32 s15, 0x20000")
    e("s_cmp_lg_u32 s26, 0")
    e("s_cbranch_scc1 L_nofetch")
    e("buffer_load_dword v21, off, s[12:15], s54 sc1")
    e("s_mov_b32 s16, s46")
    e("s_and_b32 s17, s47, 0xffff")
    e("s_mov_b32 s18, 1152")
    e("s_mov_b32 s19, 0x20000")
    e("s_mov_b32 s20, s48")
    e("s_and_b32 s21, s49, 0xffff")
    e("s_mov_b32 s22, 1152")
    e("s_mov_b32 s23, 0x20000")
    e("s_and_b32 s41, s24, 31")
    e("s_mul_i32 s41, s41, 36")
    e("v_lshrrev_b32 v1, 3, v0")
    e("buffer_load_ushort v22, v1, s[16:19], s41 offen")
    e("buffer_load_ushort v23, v1, s[20:23], s41 offen")
    g.label("L_nofetch")
    e("s_mov_b32 s35, s27")
    for i in range(NR):
        if i:
            e("s_add_u32 s35, s35, %d" % ROWB)
        r = rowreg(i)
        e("buffer_load_dwordx4 v[%d:%d], v0, s[4:7], s35 offen%s" % (r, r + 3, ldf))
        g.vm_issue("row%d" % i)
    e("s_mov_b32 s8, s50")
    e("s_and_b32 s9, s51, 0xffff")
    e("s_mov_b32 s10, %d" % X_BYTES)
    e("s_mov_b32 s11, 0x20000")
    for r in range(2, 10):
        e("v_mov_b32 v%d, 0" % r)
    if a.stamps:
        stamp2(g, 0, counted=False)
    e("s_waitcnt lgkmcnt(0)")
    e("s_lshl_b32 s30, s30, 16")

    def stats(src):
        for j in range(4):
            e("v_lshlrev_b32 v%d, 16, v%d" % (10 + 2 * j, src + j))
            e("v_and_b32 v%d, s42, v%d" % (11 + 2 * j, src + j))
        for j in range(4):
            t = 10 + 2 * j
            e("v_pk_add_f32 v[%d:%d], v[%d:%d], s[30:31] op_sel_hi:[1,0] neg_lo:[0,1] neg_hi:[0,1]" % (t, t + 1, t, t + 1))
        for j in range(4):
            t = 10 + 2 * j
            a1 = 2 if j % 2 == 0 else 6
            a2 = 4 if j % 2 == 0 else 8
            e("v_pk_add_f32 v[%d:%d], v[%d:%d], v[%d:%d]" % (a1, a1 + 1, a1, a1 + 1, t, t + 1))
            e("v_pk_fma_f32 v[%d:%d], v[%d:%d], v[%d:%d], v[%d:%d]" % (a2, a2 + 1, t, t + 1, t, t + 1, a2, a2 + 1))

    def wave_reduce(r1, r2):
        for mod in ("row_shr:1 row_mask:0xf", "row_shr:2 row_mask:0xf", "row_shr:4 row_mask:0xf", "row_shr:8 row_mask:0xf",
                    "row_bcast:15 row_mask:0xa", "row_bcast:31 row_mask:0xc"):
            e("s_nop 1")
            e("v_add_f32_dpp v%d, v%d, v%d %s bank_mask:0xf" % (r1, r1, r1, mod))
            e("v_add_f32_dpp v%d, v%d, v%d %s bank_mask:0xf" % (r2, r2, r2, mod))

    for i in range(NR):
        g.vm_wait("row%d" % i)
        stats(rowreg(i))
    e("v_pk_add_f32 v[2:3], v[2:3], v[6:7]")
    e("v_pk_add_f32 v[4:5], v[4:5], v[8:9]")
    e("v_add_f32 v2, v2, v3")
    e("v_add_f32 v3, v4, v5")
    wave_reduce(2, 3)
    e("s_lshl_b32 s40, s26, 3")
    e("v_mov_b32 v4, s40")
    e("s_lshl_b64 exec, 1, 63")
    e("ds_write_b64 v4, v[2:3]")
    e("s_mov_b64 exec, -1")
    if a.stamps:
        stamp2(g, 1, counted=False)
    e("s_waitcnt lgkmcnt(0)")
    e("s_barrier")
    e("s_cmp_lg_u32 s26, 0")
    e("s_cbranch_scc1 L_wait2")
    e("v_mov_b32 v4, 0")
    e("ds_read_b128 v[10:13], v4")
    e("ds_read_b128 v[14:17], v4 offset:16")
    if NW == 8:
        e("ds_read_b128 v[2:5], v4 offset:32")
        e("ds_read_b128 v[6:9], v4 offset:48")
    e("s_waitcnt vmcnt(0) lgkmcnt(0)")
    e("v_readfirstlane_b32 s34, v21")
    e("v_pk_add_f32 v[10:11], v[10:11], v[12:13]")
    e("v_pk_add_f32 v[14:15], v[14:15], v[16:17]")
    if NW == 8:
        e("v_pk_add_f32 v[2:3], v[2:3], v[4:5]")
        e("v_pk_add_f32 v[6:7], v[6:7], v[8:9]")
        e("v_pk_add_f32 v[2:3], v[2:3], v[6:7]")
    e("s_add_u32 s34, s34, 1")
    e("v_pk_add_f32 v[10:11], v[10:11], v[14:15]")
    if NW == 8:
        e("v_pk_add_f32 v[10:11], v[10:11], v[2:3]")
    e("v_mov_b32 v15, s34")
    e("v_mov_b32 v17, s34")
    e("v_mov_b32 v14, v10")
    e("v_mov_b32 v16, v11")
    e("s_mov_b64 exec, 1")
    e("buffer_store_dwordx4 v[14:17], off, s[12:15], s56 sc1")
    e("s_mov_b64 exec, -1")
    e("v_lshlrev_b32 v22, 16, v22")
    e("v_lshlrev_b32 v23, 16, v23")
    e("s_mov_b32 s57, %d" % a.spin)
    if T < 64:
        e("s_mov_b32 s58, 0x%x" % (((1 << T) - 1) & 0xffffffff))
        e("s_mov_b32 s59, 0x%x" % (((1 << T) - 1) >> 32))
    else:
        e("s_mov_b64 s[58:59], -1")
    e("v_mov_b32 v10, 0")
    e("v_mov_b32 v12, 0")
    e("s_mov_b64 exec, s[58:59]")
    if a.presleep:
        e("s_sleep %d" % a.presleep)
    g.label("L_poll")
    e("buffer_load_dwordx4 v[10:13], v0, s[12:15], s55 offen sc1")
    e("s_waitcnt vmcnt(0)")
    e("v_cmp_eq_u32 vcc, s34, v11")
    e("v_cmp_eq_u32 s[60:61], s34, v13")
    e("s_nop 1")
    e("s_and_b64 vcc, vcc, s[60:61]")
    e("s_cmp_eq_u64 vcc, s[58:59]")
    e("s_cbranch_scc1 L_ok")
    e("s_sub_u32 s57, s57, 1")
    e("s_cmp_eq_u32 s57, 0")
    e("s_cbranch_scc1 L_ok")
    e("s_sleep %d" % a.sleep)
    e("s_branch L_poll")
    g.label("L_ok")
    e("s_mov_b64 exec, -1")
    wave_reduce(10, 12)
    e("s_nop 1")
    e("v_readlane_b32 s58, v10, 63")
    e("v_readlane_b32 s59, v12, 63")
    e("s_mov_b32 s57, 0x%08x" % f32bits(1.0 / NELEM))
    e("v_mov_b32 v10, s58")
    e("v_mov_b32 v11, s59")
    e("v_mul_f32 v10, s57, v10")
    e("v_mul_f32 v11, s57, v11")
    e("v_fma_f32 v11, -v10, v10, v11")
    e("v_max_f32 v11, 0, v11")
    e("v_add_f32 v11, 0x%08x, v11" % f32bits(1e-5))
    e("v_rsq_f32 v11, v11")
    e("v_add_f32 v10, s30, v10")
    e("v_mul_f32 v18, v22, v11")
    e("v_fma_f32 v19, -v10, v18, v23")
    e("v_lshrrev_b32 v1, 1, v0")
    e("ds_write_b64 v1, v[18:19] offset:64")
    e("s_cmp_lg_u32 s25, 0")
    e("s_cbranch_scc1 L_noep")
    e("v_mov_b32 v11, s34")
    e("buffer_store_dword v11, off, s[12:15], s54 sc1")
    g.label("L_noep")
    e("s_waitcnt lgkmcnt(0)")
    g.label("L_wait2")
    e("s_barrier")
    if a.stamps:
        stamp2(g, 2, counted=False)
    e("v_and_b32 v1, 0x3ff, v0")
    e("v_lshrrev_b32 v1, 1, v1")
    e("ds_read_b64 v[18:19], v1 offset:64")
    e("s_mov_b32 s35, s27")
    e("s_waitcnt lgkmcnt(0)")
    for i in range(NR):
        e("s_add_u32 s40, s29, %d" % i)
        e("s_lshr_b32 s40, s40, %d" % rpc_log)
        e("v_readlane_b32 s41, v19, s40")
        e("v_readlane_b32 s36, v18, s40")
        if i:
            e("s_add_u32 s35, s35, %d" % ROWB)
        else:
            e("s_nop 0")
        e("v_mov_b32 v20, s41")
        r = rowreg(i)
        for j in range(4):
            e("v_lshlrev_b32 v%d, 16, v%d" % (10 + 2 * j, r + j))
            e("v_and_b32 v%d, s42, v%d" % (11 + 2 * j, r + j))
        for j in range(4):
            t = 10 + 2 * j
            e("v_pk_fma_f32 v[%d:%d], v[%d:%d], s[36:37], v[20:21] op_sel_hi:[1,0,0]" % (t, t + 1, t, t + 1))
        for j in range(4):
            t = 10 + 2 * j
            e("v_cvt_pk_bf16_f32 v%d, v%d, v%d" % (r + j, t, t + 1))
        e("buffer_store_dwordx4 v[%d:%d], v0, s[8:11], s35 offen%s" % (r, r + 3, stf))
    if a.stamps:
        stamp2(g, 3, counted=False)
        e("s_waitcnt vmcnt(0)")
        stamp2(g, 4, counted=False)
    g.label("L_end")
    e("s_endpgm")

    out += g.L
    out += ['.section .rodata,"a"', ".p2align 6", ".amdhsa_kernel %s" % NAME,
            "  .amdhsa_next_free_vgpr %d" % (a.vgpr or NVGPR), "  .amdhsa_next_free_sgpr 66",
            "  .amdhsa_accum_offset %d" % (((a.vgpr or NVGPR) + 3) // 4 * 4), "  .amdhsa_group_segment_fixed_size 0",
            "  .amdhsa_kernarg_size 48", "  .amdhsa_user_sgpr_count 2", "  .amdhsa_user_sgpr_kernarg_segment_ptr 1",
            "  .amdhsa_system_sgpr_workgroup_id_x 1", "  .amdhsa_float_denorm_mode_32 3", ".end_amdhsa_kernel"]
    return "\n".join(out) + "\n", NWG, TH, LDS_BYTES


def stamp2(g, slot, counted):
    e = g.e
    e("s_memrealtime s[60:61]")
    e("s_waitcnt lgkmcnt(0)")
    e("v_mov_b32 v10, s60")
    e("v_mov_b32 v11, s61")
    e("s_add_u32 s62, s63, %d" % (slot * 8))
    e("s_mov_b64 exec, 1")
    e("buffer_store_dwordx2 v[10:11], off, s[12:15], s62")
    e("s_mov_b64 exec, -1")
    e("s_nop 1")


if __name__ == "__main__":
    p = argparse.ArgumentParser()
    p.add_argument("-o", default="standalone__groupnorm__prompt.s")
    p.add_argument("--threads", type=int, default=256)
    p.add_argument("--nr", type=int, default=9)
    p.add_argument("--ldflags", default=" nt")
    p.add_argument("--stflags", default="")
    p.add_argument("--remap", type=int, default=0)
    p.add_argument("--spin", type=int, default=20000)
    p.add_argument("--sleep", type=int, default=8)
    p.add_argument("--presleep", type=int, default=0)
    p.add_argument("--stamps", type=int, default=0)
    p.add_argument("--vgpr", type=int, default=0)
    p.add_argument("--lds", type=int, default=0)
    a = p.parse_args()
    txt, nwg, th, lds = build(a)
    if a.lds:
        txt = txt.replace("lds=%d" % lds, "lds=%d" % a.lds)
        lds = a.lds
    open(a.o, "w").write(txt)
    print(nwg, th, lds)
```

```python
import argparse, struct
from gen import HEADER, NAME, GRP_BYTES, CH_BYTES, X_BYTES, NELEM, Gen, f32bits


def build(a):
    g = Gen(a)
    e = g.e
    TH = a.threads
    NW = TH // 64
    NR = a.nr
    ROWB = TH * 16
    rows_per_group = GRP_BYTES // ROWB
    assert rows_per_group % NR == 0
    T = rows_per_group // NR
    assert T <= 64
    NWG = 64 * T
    rpc_log = (CH_BYTES // ROWB).bit_length() - 1
    DATA0 = 24
    NVGPR = DATA0 + 4 * NR
    ldf, stf = a.ldflags, a.stflags
    GRAN0 = 8192
    WS_BYTES = GRAN0 + 64 * 1024
    LDS_BYTES = 1024
    magicT = (1 << 32) // T + 1

    def rowreg(i):
        return DATA0 + 4 * i

    out = [HEADER.rstrip("\n"),
           "; @launch grid=(%d,1,1) block=(%d,1,1) lds=%d" % (NWG, TH, LDS_BYTES),
           '.amdgcn_target "amdgcn-amd-amdhsa--gfx950"', ".text", ".globl %s" % NAME, ".p2align 8",
           ".type %s,@function" % NAME, "%s:" % NAME]

    e("s_cmp_ge_u32 s2, %d" % NWG)
    e("s_cbranch_scc1 L_end")
    e("s_load_dwordx4 s[44:47], s[0:1], 0")
    e("s_load_dwordx4 s[48:51], s[0:1], 16")
    e("s_load_dwordx2 s[52:53], s[0:1], 40")
    e("v_lshrrev_b32 v1, 6, v0")
    e("v_lshlrev_b32 v0, 4, v0")
    e("v_readfirstlane_b32 s26, v1")
    if a.remap:
        e("s_and_b32 s3, s2, 7")
        e("s_lshr_b32 s25, s2, 3")
        e("s_mul_hi_u32 s24, s25, %d" % magicT)
        e("s_mul_i32 s40, s24, %d" % T)
        e("s_sub_u32 s25, s25, s40")
        e("s_lshl_b32 s24, s24, 3")
        e("s_add_u32 s24, s24, s3")
        e("s_mul_i32 s40, s24, %d" % T)
        e("s_add_u32 s3, s40, s25")
    else:
        if T & (T - 1) == 0:
            e("s_lshr_b32 s24, s2, %d" % (T.bit_length() - 1))
            e("s_and_b32 s25, s2, %d" % (T - 1))
        else:
            e("s_mul_hi_u32 s24, s2, %d" % magicT)
            e("s_mul_i32 s40, s24, %d" % T)
            e("s_sub_u32 s25, s2, s40")
        e("s_mov_b32 s3, s2")
    e("s_mul_i32 s27, s3, %d" % (NR * ROWB))
    e("s_mul_i32 s28, s24, %d" % GRP_BYTES)
    e("s_mul_i32 s29, s25, %d" % NR)
    e("s_mov_b32 s42, 0xffff0000")
    e("s_lshl_b32 s54, s24, 7")
    e("s_lshl_b32 s55, s24, 10")
    e("s_add_u32 s55, s55, %d" % GRAN0)
    e("s_lshl_b32 s56, s25, 4")
    e("s_add_u32 s56, s56, s55")
    if a.stamps:
        e("s_mul_i32 s63, s2, %d" % NW)
        e("s_add_u32 s63, s63, s26")
        e("s_lshl_b32 s63, s63, 7")
        e("s_add_u32 s63, s63, 0x100000")
    e("s_waitcnt lgkmcnt(0)")
    e("s_mov_b32 s4, s44")
    e("s_and_b32 s5, s45, 0xffff")
    e("s_mov_b32 s6, %d" % X_BYTES)
    e("s_mov_b32 s7, 0x20000")
    e("s_load_dword s30, s[44:45], s28")
    if a.dbgtime:
        e("s_load_dwordx2 s[64:65], s[0:1], 32")
        e("s_memrealtime s[60:61]")
        e("s_waitcnt lgkmcnt(0)")
        e("s_and_b32 s65, s65, 0xffff")
        e("s_mov_b32 s66, 256")
        e("s_mov_b32 s67, 0x20000")
        e("s_not_b32 s60, s60")
        e("v_mov_b32 v10, s60")
        e("s_mov_b64 exec, 1")
        e("buffer_atomic_umax v10, off, s[64:67], 0")
        e("s_mov_b64 exec, -1")
    e("s_mov_b32 s12, s52")
    e("s_and_b32 s13, s53, 0xffff")
    e("s_mov_b32 s14, %d" % (0x4000000 if a.stamps else WS_BYTES))
    e("s_mov_b32 s15, 0x20000")
    e("s_cmp_lg_u32 s26, 0")
    e("s_cbranch_scc1 L_nofetch")
    e("buffer_load_dword v21, off, s[12:15], s54 sc1")
    e("s_mov_b32 s16, s46")
    e("s_and_b32 s17, s47, 0xffff")
    e("s_mov_b32 s18, 1152")
    e("s_mov_b32 s19, 0x20000")
    e("s_mov_b32 s20, s48")
    e("s_and_b32 s21, s49, 0xffff")
    e("s_mov_b32 s22, 1152")
    e("s_mov_b32 s23, 0x20000")
    e("s_and_b32 s41, s24, 31")
    e("s_mul_i32 s41, s41, 36")
    e("v_lshrrev_b32 v1, 3, v0")
    e("buffer_load_ushort v22, v1, s[16:19], s41 offen")
    e("buffer_load_ushort v23, v1, s[20:23], s41 offen")
    g.label("L_nofetch")
    e("s_mov_b32 s35, s27")
    for i in range(NR):
        if i:
            e("s_add_u32 s35, s35, %d" % ROWB)
        r = rowreg(i)
        e("buffer_load_dwordx4 v[%d:%d], v0, s[4:7], s35 offen%s" % (r, r + 3, ldf))
        g.vm_issue("row%d" % i)
    e("s_mov_b32 s8, s50")
    e("s_and_b32 s9, s51, 0xffff")
    e("s_mov_b32 s10, %d" % X_BYTES)
    e("s_mov_b32 s11, 0x20000")
    for r in range(2, 10):
        e("v_mov_b32 v%d, 0" % r)
    if a.stamps:
        stamp2(g, 0, counted=False)
    e("s_waitcnt lgkmcnt(0)")
    e("s_lshl_b32 s30, s30, 16")

    def stats(src):
        for j in range(4):
            e("v_lshlrev_b32 v%d, 16, v%d" % (10 + 2 * j, src + j))
            e("v_and_b32 v%d, s42, v%d" % (11 + 2 * j, src + j))
        for j in range(4):
            t = 10 + 2 * j
            e("v_pk_add_f32 v[%d:%d], v[%d:%d], s[30:31] op_sel_hi:[1,0] neg_lo:[0,1] neg_hi:[0,1]" % (t, t + 1, t, t + 1))
        for j in range(4):
            t = 10 + 2 * j
            a1 = 2 if j % 2 == 0 else 6
            a2 = 4 if j % 2 == 0 else 8
            e("v_pk_add_f32 v[%d:%d], v[%d:%d], v[%d:%d]" % (a1, a1 + 1, a1, a1 + 1, t, t + 1))
            e("v_pk_fma_f32 v[%d:%d], v[%d:%d], v[%d:%d], v[%d:%d]" % (a2, a2 + 1, t, t + 1, t, t + 1, a2, a2 + 1))

    def wave_reduce(r1, r2):
        for mod in ("row_shr:1 row_mask:0xf", "row_shr:2 row_mask:0xf", "row_shr:4 row_mask:0xf", "row_shr:8 row_mask:0xf",
                    "row_bcast:15 row_mask:0xa", "row_bcast:31 row_mask:0xc"):
            e("s_nop 1")
            e("v_add_f32_dpp v%d, v%d, v%d %s bank_mask:0xf" % (r1, r1, r1, mod))
            e("v_add_f32_dpp v%d, v%d, v%d %s bank_mask:0xf" % (r2, r2, r2, mod))

    for i in range(NR):
        g.vm_wait("row%d" % i)
        stats(rowreg(i))
    e("v_pk_add_f32 v[2:3], v[2:3], v[6:7]")
    e("v_pk_add_f32 v[4:5], v[4:5], v[8:9]")
    e("v_add_f32 v2, v2, v3")
    e("v_add_f32 v3, v4, v5")
    wave_reduce(2, 3)
    e("s_lshl_b32 s40, s26, 3")
    e("v_mov_b32 v4, s40")
    e("s_lshl_b64 exec, 1, 63")
    e("ds_write_b64 v4, v[2:3]")
    e("s_mov_b64 exec, -1")
    if a.stamps:
        stamp2(g, 1, counted=False)
    e("s_waitcnt lgkmcnt(0)")
    e("s_barrier")
    e("s_cmp_lg_u32 s26, 0")
    e("s_cbranch_scc1 L_wait2")
    e("v_mov_b32 v4, 0")
    e("ds_read_b128 v[10:13], v4")
    e("ds_read_b128 v[14:17], v4 offset:16")
    if NW == 8:
        e("ds_read_b128 v[2:5], v4 offset:32")
        e("ds_read_b128 v[6:9], v4 offset:48")
    e("s_waitcnt vmcnt(0) lgkmcnt(0)")
    e("v_readfirstlane_b32 s34, v21")
    e("v_pk_add_f32 v[10:11], v[10:11], v[12:13]")
    e("v_pk_add_f32 v[14:15], v[14:15], v[16:17]")
    if NW == 8:
        e("v_pk_add_f32 v[2:3], v[2:3], v[4:5]")
        e("v_pk_add_f32 v[6:7], v[6:7], v[8:9]")
        e("v_pk_add_f32 v[2:3], v[2:3], v[6:7]")
    e("s_add_u32 s34, s34, 1")
    e("v_pk_add_f32 v[10:11], v[10:11], v[14:15]")
    if NW == 8:
        e("v_pk_add_f32 v[10:11], v[10:11], v[2:3]")
    e("v_mov_b32 v15, s34")
    e("v_mov_b32 v17, s34")
    e("v_mov_b32 v14, v10")
    e("v_mov_b32 v16, v11")
    e("s_mov_b64 exec, 1")
    e("buffer_store_dwordx4 v[14:17], off, s[12:15], s56 sc1")
    e("s_mov_b64 exec, -1")
    e("v_lshlrev_b32 v22, 16, v22")
    e("v_lshlrev_b32 v23, 16, v23")
    e("s_mov_b32 s57, %d" % a.spin)
    if T < 64:
        e("s_mov_b32 s58, 0x%x" % (((1 << T) - 1) & 0xffffffff))
        e("s_mov_b32 s59, 0x%x" % (((1 << T) - 1) >> 32))
    else:
        e("s_mov_b64 s[58:59], -1")
    e("v_mov_b32 v10, 0")
    e("v_mov_b32 v12, 0")
    e("s_mov_b64 exec, s[58:59]")
    if a.presleep:
        e("s_sleep %d" % a.presleep)
    g.label("L_poll")
    e("buffer_load_dwordx4 v[10:13], v0, s[12:15], s55 offen sc1")
    e("s_waitcnt vmcnt(0)")
    e("v_cmp_eq_u32 vcc, s34, v11")
    e("v_cmp_eq_u32 s[60:61], s34, v13")
    e("s_nop 1")
    e("s_and_b64 vcc, vcc, s[60:61]")
    e("s_cmp_eq_u64 vcc, s[58:59]")
    e("s_cbranch_scc1 L_ok")
    e("s_sub_u32 s57, s57, 1")
    e("s_cmp_eq_u32 s57, 0")
    e("s_cbranch_scc1 L_ok")
    e("s_sleep %d" % a.sleep)
    e("s_branch L_poll")
    g.label("L_ok")
    e("s_mov_b64 exec, -1")
    wave_reduce(10, 12)
    e("s_nop 1")
    e("v_readlane_b32 s58, v10, 63")
    e("v_readlane_b32 s59, v12, 63")
    e("s_mov_b32 s57, 0x%08x" % f32bits(1.0 / NELEM))
    e("v_mov_b32 v10, s58")
    e("v_mov_b32 v11, s59")
    e("v_mul_f32 v10, s57, v10")
    e("v_mul_f32 v11, s57, v11")
    e("v_fma_f32 v11, -v10, v10, v11")
    e("v_max_f32 v11, 0, v11")
    e("v_add_f32 v11, 0x%08x, v11" % f32bits(1e-5))
    e("v_rsq_f32 v11, v11")
    e("v_add_f32 v10, s30, v10")
    e("v_mul_f32 v18, v22, v11")
    e("v_fma_f32 v19, -v10, v18, v23")
    e("v_lshrrev_b32 v1, 1, v0")
    e("ds_write_b64 v1, v[18:19] offset:64")
    e("s_cmp_lg_u32 s25, 0")
    e("s_cbranch_scc1 L_noep")
    e("v_mov_b32 v11, s34")
    e("buffer_store_dword v11, off, s[12:15], s54 sc1")
    g.label("L_noep")
    e("s_waitcnt lgkmcnt(0)")
    g.label("L_wait2")
    e("s_barrier")
    if a.stamps:
        stamp2(g, 2, counted=False)
    e("v_and_b32 v1, 0x3ff, v0")
    e("v_lshrrev_b32 v1, 1, v1")
    e("ds_read_b64 v[18:19], v1 offset:64")
    e("s_mov_b32 s35, s27")
    e("s_waitcnt lgkmcnt(0)")
    for i in range(NR):
        e("s_add_u32 s40, s29, %d" % i)
        e("s_lshr_b32 s40, s40, %d" % rpc_log)
        e("v_readlane_b32 s41, v19, s40")
        e("v_readlane_b32 s36, v18, s40")
        if i:
            e("s_add_u32 s35, s35, %d" % ROWB)
        else:
            e("s_nop 0")
        e("v_mov_b32 v20, s41")
        r = rowreg(i)
        for j in range(4):
            e("v_lshlrev_b32 v%d, 16, v%d" % (10 + 2 * j, r + j))
            e("v_and_b32 v%d, s42, v%d" % (11 + 2 * j, r + j))
        for j in range(4):
            t = 10 + 2 * j
            e("v_pk_fma_f32 v[%d:%d], v[%d:%d], s[36:37], v[20:21] op_sel_hi:[1,0,0]" % (t, t + 1, t, t + 1))
        for j in range(4):
            t = 10 + 2 * j
            e("v_cvt_pk_bf16_f32 v%d, v%d, v%d" % (r + j, t, t + 1))
        e("buffer_store_dwordx4 v[%d:%d], v0, s[8:11], s35 offen%s" % (r, r + 3, stf))
    if a.stamps:
        stamp2(g, 3, counted=False)
        e("s_waitcnt vmcnt(0)")
        stamp2(g, 4, counted=False)
    if a.dbgtime:
        e("s_waitcnt vmcnt(0)")
        e("s_memrealtime s[60:61]")
        e("s_waitcnt lgkmcnt(0)")
        e("v_mov_b32 v10, s60")
        e("s_mov_b64 exec, 1")
        e("buffer_atomic_umax v10, off, s[64:67], 0 offset:4")
        e("s_mov_b64 exec, -1")
    g.label("L_end")
    e("s_endpgm")

    out += g.L
    out += ['.section .rodata,"a"', ".p2align 6", ".amdhsa_kernel %s" % NAME,
            "  .amdhsa_next_free_vgpr %d" % (a.vgpr or NVGPR), "  .amdhsa_next_free_sgpr %d" % (68 if a.dbgtime else 66),
            "  .amdhsa_accum_offset %d" % (((a.vgpr or NVGPR) + 3) // 4 * 4), "  .amdhsa_group_segment_fixed_size 0",
            "  .amdhsa_kernarg_size 48", "  .amdhsa_user_sgpr_count 2", "  .amdhsa_user_sgpr_kernarg_segment_ptr 1",
            "  .amdhsa_system_sgpr_workgroup_id_x 1", "  .amdhsa_float_denorm_mode_32 3", ".end_amdhsa_kernel"]
    return "\n".join(out) + "\n", NWG, TH, LDS_BYTES


def stamp2(g, slot, counted):
    e = g.e
    e("s_memrealtime s[60:61]")
    e("s_waitcnt lgkmcnt(0)")
    e("v_mov_b32 v10, s60")
    e("v_mov_b32 v11, s61")
    e("s_add_u32 s62, s63, %d" % (slot * 8))
    e("s_mov_b64 exec, 1")
    e("buffer_store_dwordx2 v[10:11], off, s[12:15], s62")
    e("s_mov_b64 exec, -1")
    e("s_nop 1")


if __name__ == "__main__":
    p = argparse.ArgumentParser()
    p.add_argument("-o", default="standalone__groupnorm__prompt.s")
    p.add_argument("--threads", type=int, default=256)
    p.add_argument("--nr", type=int, default=9)
    p.add_argument("--ldflags", default=" nt")
    p.add_argument("--stflags", default="")
    p.add_argument("--remap", type=int, default=0)
    p.add_argument("--spin", type=int, default=20000)
    p.add_argument("--sleep", type=int, default=8)
    p.add_argument("--presleep", type=int, default=0)
    p.add_argument("--stamps", type=int, default=0)
    p.add_argument("--vgpr", type=int, default=0)
    p.add_argument("--lds", type=int, default=0)
    p.add_argument("--dbgtime", type=int, default=0)
    a = p.parse_args()
    txt, nwg, th, lds = build(a)
    if a.lds:
        txt = txt.replace("lds=%d" % lds, "lds=%d" % a.lds)
        lds = a.lds
    open(a.o, "w").write(txt)
    print(nwg, th, lds)
```

```python
import argparse, struct
from gen import HEADER, NAME, GRP_BYTES, CH_BYTES, X_BYTES, NELEM, Gen, f32bits


def build(a):
    g = Gen(a)
    e = g.e
    TH = a.threads
    NW = TH // 64
    NR = a.nr
    ROWB = TH * 16
    rows_per_group = GRP_BYTES // ROWB
    assert rows_per_group % NR == 0
    T = rows_per_group // NR
    assert T <= 64
    NWG = 64 * T
    rpc_log = (CH_BYTES // ROWB).bit_length() - 1
    DATA0 = 24
    NVGPR = DATA0 + 4 * NR
    ldf, stf = a.ldflags, a.stflags
    GRAN0 = 8192
    WS_BYTES = GRAN0 + 64 * 1024
    LDS_BYTES = 1024
    magicT = (1 << 32) // T + 1

    def rowreg(i):
        return DATA0 + 4 * i

    out = [HEADER.rstrip("\n"),
           "; @launch grid=(%d,1,1) block=(%d,1,1) lds=%d" % (NWG, TH, LDS_BYTES),
           '.amdgcn_target "amdgcn-amd-amdhsa--gfx950"', ".text", ".globl %s" % NAME, ".p2align 8",
           ".type %s,@function" % NAME, "%s:" % NAME]

    e("s_cmp_ge_u32 s2, %d" % NWG)
    e("s_cbranch_scc1 L_end")
    e("s_load_dwordx4 s[44:47], s[0:1], 0")
    e("s_load_dwordx4 s[48:51], s[0:1], 16")
    e("s_load_dwordx2 s[52:53], s[0:1], 40")
    e("v_lshrrev_b32 v1, 6, v0")
    e("v_lshlrev_b32 v0, 4, v0")
    e("v_readfirstlane_b32 s26, v1")
    if a.remap:
        e("s_and_b32 s3, s2, 7")
        e("s_lshr_b32 s25, s2, 3")
        e("s_mul_hi_u32 s24, s25, %d" % magicT)
        e("s_mul_i32 s40, s24, %d" % T)
        e("s_sub_u32 s25, s25, s40")
        e("s_lshl_b32 s24, s24, 3")
        e("s_add_u32 s24, s24, s3")
        e("s_mul_i32 s40, s24, %d" % T)
        e("s_add_u32 s3, s40, s25")
    else:
        if T & (T - 1) == 0:
            e("s_lshr_b32 s24, s2, %d" % (T.bit_length() - 1))
            e("s_and_b32 s25, s2, %d" % (T - 1))
        else:
            e("s_mul_hi_u32 s24, s2, %d" % magicT)
            e("s_mul_i32 s40, s24, %d" % T)
            e("s_sub_u32 s25, s2, s40")
        e("s_mov_b32 s3, s2")
    e("s_mul_i32 s27, s3, %d" % (NR * ROWB))
    e("s_mul_i32 s28, s24, %d" % GRP_BYTES)
    e("s_mul_i32 s29, s25, %d" % NR)
    e("s_mov_b32 s42, 0xffff0000")
    e("s_lshl_b32 s54, s24, 7")
    e("s_lshl_b32 s55, s24, 10")
    e("s_add_u32 s55, s55, %d" % GRAN0)
    e("s_lshl_b32 s56, s25, 4")
    e("s_add_u32 s56, s56, s55")
    if a.stamps:
        e("s_mul_i32 s63, s2, %d" % NW)
        e("s_add_u32 s63, s63, s26")
        e("s_lshl_b32 s63, s63, 7")
        e("s_add_u32 s63, s63, 0x100000")
    e("s_waitcnt lgkmcnt(0)")
    e("s_mov_b32 s4, s44")
    e("s_and_b32 s5, s45, 0xffff")
    e("s_mov_b32 s6, %d" % X_BYTES)
    e("s_mov_b32 s7, 0x20000")
    e("s_load_dword s30, s[44:45], s28")
    if a.dbgtime:
        e("s_load_dwordx2 s[64:65], s[0:1], 32")
        e("s_memrealtime s[60:61]")
        e("s_waitcnt lgkmcnt(0)")
        e("s_and_b32 s65, s65, 0xffff")
        e("s_mov_b32 s66, 256")
        e("s_mov_b32 s67, 0x20000")
        e("s_not_b32 s60, s60")
        e("v_mov_b32 v10, s60")
        e("s_lshl_b32 s61, s26, 16")
        e("s_add_u32 s61, s61, s2")
        e("s_cmp_ge_u32 s61, 16")
        e("s_cbranch_scc1 L_nodbg0")
        e("s_mov_b64 exec, 1")
        e("buffer_atomic_umax v10, off, s[64:67], 0")
        e("s_mov_b64 exec, -1")
        e("s_waitcnt vmcnt(0)")
        g.label("L_nodbg0")
    e("s_mov_b32 s12, s52")
    e("s_and_b32 s13, s53, 0xffff")
    e("s_mov_b32 s14, %d" % (0x4000000 if a.stamps else WS_BYTES))
    e("s_mov_b32 s15, 0x20000")
    e("s_cmp_lg_u32 s26, 0")
    e("s_cbranch_scc1 L_nofetch")
    e("buffer_load_dword v21, off, s[12:15], s54 sc1")
    e("s_mov_b32 s16, s46")
    e("s_and_b32 s17, s47, 0xffff")
    e("s_mov_b32 s18, 1152")
    e("s_mov_b32 s19, 0x20000")
    e("s_mov_b32 s20, s48")
    e("s_and_b32 s21, s49, 0xffff")
    e("s_mov_b32 s22, 1152")
    e("s_mov_b32 s23, 0x20000")
    e("s_and_b32 s41, s24, 31")
    e("s_mul_i32 s41, s41, 36")
    e("v_lshrrev_b32 v1, 3, v0")
    e("buffer_load_ushort v22, v1, s[16:19], s41 offen")
    e("buffer_load_ushort v23, v1, s[20:23], s41 offen")
    g.label("L_nofetch")
    e("s_mov_b32 s35, s27")
    for i in range(NR):
        if i:
            e("s_add_u32 s35, s35, %d" % ROWB)
        r = rowreg(i)
        e("buffer_load_dwordx4 v[%d:%d], v0, s[4:7], s35 offen%s" % (r, r + 3, ldf))
        g.vm_issue("row%d" % i)
    e("s_mov_b32 s8, s50")
    e("s_and_b32 s9, s51, 0xffff")
    e("s_mov_b32 s10, %d" % X_BYTES)
    e("s_mov_b32 s11, 0x20000")
    for r in range(2, 10):
        e("v_mov_b32 v%d, 0" % r)
    if a.stamps:
        stamp2(g, 0, counted=False)
    e("s_waitcnt lgkmcnt(0)")
    e("s_lshl_b32 s30, s30, 16")

    def stats(src):
        for j in range(4):
            e("v_lshlrev_b32 v%d, 16, v%d" % (10 + 2 * j, src + j))
            e("v_and_b32 v%d, s42, v%d" % (11 + 2 * j, src + j))
        for j in range(4):
            t = 10 + 2 * j
            e("v_pk_add_f32 v[%d:%d], v[%d:%d], s[30:31] op_sel_hi:[1,0] neg_lo:[0,1] neg_hi:[0,1]" % (t, t + 1, t, t + 1))
        for j in range(4):
            t = 10 + 2 * j
            a1 = 2 if j % 2 == 0 else 6
            a2 = 4 if j % 2 == 0 else 8
            e("v_pk_add_f32 v[%d:%d], v[%d:%d], v[%d:%d]" % (a1, a1 + 1, a1, a1 + 1, t, t + 1))
            e("v_pk_fma_f32 v[%d:%d], v[%d:%d], v[%d:%d], v[%d:%d]" % (a2, a2 + 1, t, t + 1, t, t + 1, a2, a2 + 1))

    def wave_reduce(r1, r2):
        for mod in ("row_shr:1 row_mask:0xf", "row_shr:2 row_mask:0xf", "row_shr:4 row_mask:0xf", "row_shr:8 row_mask:0xf",
                    "row_bcast:15 row_mask:0xa", "row_bcast:31 row_mask:0xc"):
            e("s_nop 1")
            e("v_add_f32_dpp v%d, v%d, v%d %s bank_mask:0xf" % (r1, r1, r1, mod))
            e("v_add_f32_dpp v%d, v%d, v%d %s bank_mask:0xf" % (r2, r2, r2, mod))

    for i in range(NR):
        g.vm_wait("row%d" % i)
        stats(rowreg(i))
    e("v_pk_add_f32 v[2:3], v[2:3], v[6:7]")
    e("v_pk_add_f32 v[4:5], v[4:5], v[8:9]")
    e("v_add_f32 v2, v2, v3")
    e("v_add_f32 v3, v4, v5")
    wave_reduce(2, 3)
    e("s_lshl_b32 s40, s26, 3")
    e("v_mov_b32 v4, s40")
    e("s_lshl_b64 exec, 1, 63")
    e("ds_write_b64 v4, v[2:3]")
    e("s_mov_b64 exec, -1")
    if a.stamps:
        stamp2(g, 1, counted=False)
    e("s_waitcnt lgkmcnt(0)")
    e("s_barrier")
    e("s_cmp_lg_u32 s26, 0")
    e("s_cbranch_scc1 L_wait2")
    e("v_mov_b32 v4, 0")
    e("ds_read_b128 v[10:13], v4")
    e("ds_read_b128 v[14:17], v4 offset:16")
    if NW == 8:
        e("ds_read_b128 v[2:5], v4 offset:32")
        e("ds_read_b128 v[6:9], v4 offset:48")
    e("s_waitcnt vmcnt(0) lgkmcnt(0)")
    e("v_readfirstlane_b32 s34, v21")
    e("v_pk_add_f32 v[10:11], v[10:11], v[12:13]")
    e("v_pk_add_f32 v[14:15], v[14:15], v[16:17]")
    if NW == 8:
        e("v_pk_add_f32 v[2:3], v[2:3], v[4:5]")
        e("v_pk_add_f32 v[6:7], v[6:7], v[8:9]")
        e("v_pk_add_f32 v[2:3], v[2:3], v[6:7]")
    e("s_add_u32 s34, s34, 1")
    e("v_pk_add_f32 v[10:11], v[10:11], v[14:15]")
    if NW == 8:
        e("v_pk_add_f32 v[10:11], v[10:11], v[2:3]")
    e("v_mov_b32 v15, s34")
    e("v_mov_b32 v17, s34")
    e("v_mov_b32 v14, v10")
    e("v_mov_b32 v16, v11")
    e("s_mov_b64 exec, 1")
    e("buffer_store_dwordx4 v[14:17], off, s[12:15], s56 sc1")
    e("s_mov_b64 exec, -1")
    e("v_lshlrev_b32 v22, 16, v22")
    e("v_lshlrev_b32 v23, 16, v23")
    e("s_mov_b32 s57, %d" % a.spin)
    if T < 64:
        e("s_mov_b32 s58, 0x%x" % (((1 << T) - 1) & 0xffffffff))
        e("s_mov_b32 s59, 0x%x" % (((1 << T) - 1) >> 32))
    else:
        e("s_mov_b64 s[58:59], -1")
    e("v_mov_b32 v10, 0")
    e("v_mov_b32 v12, 0")
    e("s_mov_b64 exec, s[58:59]")
    if a.presleep:
        e("s_sleep %d" % a.presleep)
    g.label("L_poll")
    e("buffer_load_dwordx4 v[10:13], v0, s[12:15], s55 offen sc1")
    e("s_waitcnt vmcnt(0)")
    e("v_cmp_eq_u32 vcc, s34, v11")
    e("v_cmp_eq_u32 s[60:61], s34, v13")
    e("s_nop 1")
    e("s_and_b64 vcc, vcc, s[60:61]")
    e("s_cmp_eq_u64 vcc, s[58:59]")
    e("s_cbranch_scc1 L_ok")
    e("s_sub_u32 s57, s57, 1")
    e("s_cmp_eq_u32 s57, 0")
    e("s_cbranch_scc1 L_ok")
    e("s_sleep %d" % a.sleep)
    e("s_branch L_poll")
    g.label("L_ok")
    e("s_mov_b64 exec, -1")
    wave_reduce(10, 12)
    e("s_nop 1")
    e("v_readlane_b32 s58, v10, 63")
    e("v_readlane_b32 s59, v12, 63")
    e("s_mov_b32 s57, 0x%08x" % f32bits(1.0 / NELEM))
    e("v_mov_b32 v10, s58")
    e("v_mov_b32 v11, s59")
    e("v_mul_f32 v10, s57, v10")
    e("v_mul_f32 v11, s57, v11")
    e("v_fma_f32 v11, -v10, v10, v11")
    e("v_max_f32 v11, 0, v11")
    e("v_add_f32 v11, 0x%08x, v11" % f32bits(1e-5))
    e("v_rsq_f32 v11, v11")
    e("v_add_f32 v10, s30, v10")
    e("v_mul_f32 v18, v22, v11")
    e("v_fma_f32 v19, -v10, v18, v23")
    e("v_lshrrev_b32 v1, 1, v0")
    e("ds_write_b64 v1, v[18:19] offset:64")
    e("s_cmp_lg_u32 s25, 0")
    e("s_cbranch_scc1 L_noep")
    e("v_mov_b32 v11, s34")
    e("buffer_store_dword v11, off, s[12:15], s54 sc1")
    g.label("L_noep")
    e("s_waitcnt lgkmcnt(0)")
    g.label("L_wait2")
    e("s_barrier")
    if a.stamps:
        stamp2(g, 2, counted=False)
    e("v_and_b32 v1, 0x3ff, v0")
    e("v_lshrrev_b32 v1, 1, v1")
    e("ds_read_b64 v[18:19], v1 offset:64")
    e("s_mov_b32 s35, s27")
    e("s_waitcnt lgkmcnt(0)")
    for i in range(NR):
        e("s_add_u32 s40, s29, %d" % i)
        e("s_lshr_b32 s40, s40, %d" % rpc_log)
        e("v_readlane_b32 s41, v19, s40")
        e("v_readlane_b32 s36, v18, s40")
        if i:
            e("s_add_u32 s35, s35, %d" % ROWB)
        else:
            e("s_nop 0")
        e("v_mov_b32 v20, s41")
        r = rowreg(i)
        for j in range(4):
            e("v_lshlrev_b32 v%d, 16, v%d" % (10 + 2 * j, r + j))
            e("v_and_b32 v%d, s42, v%d" % (11 + 2 * j, r + j))
        for j in range(4):
            t = 10 + 2 * j
            e("v_pk_fma_f32 v[%d:%d], v[%d:%d], s[36:37], v[20:21] op_sel_hi:[1,0,0]" % (t, t + 1, t, t + 1))
        for j in range(4):
            t = 10 + 2 * j
            e("v_cvt_pk_bf16_f32 v%d, v%d, v%d" % (r + j, t, t + 1))
        e("buffer_store_dwordx4 v[%d:%d], v0, s[8:11], s35 offen%s" % (r, r + 3, stf))
    if a.stamps:
        stamp2(g, 3, counted=False)
        e("s_waitcnt vmcnt(0)")
        stamp2(g, 4, counted=False)
    if a.dbgtime:
        e("s_cmp_lt_u32 s2, %d" % (NWG - 128))
        e("s_cbranch_scc1 L_end")
        e("s_cmp_lg_u32 s26, 0")
        e("s_cbranch_scc1 L_end")
        e("s_waitcnt vmcnt(0)")
        e("s_memrealtime s[60:61]")
        e("s_waitcnt lgkmcnt(0)")
        e("v_mov_b32 v10, s60")
        e("s_mov_b64 exec, 1")
        e("buffer_atomic_umax v10, off, s[64:67], 0 offset:4")
        e("s_mov_b64 exec, -1")
    g.label("L_end")
    e("s_endpgm")

    out += g.L
    out += ['.section .rodata,"a"', ".p2align 6", ".amdhsa_kernel %s" % NAME,
            "  .amdhsa_next_free_vgpr %d" % (a.vgpr or NVGPR), "  .amdhsa_next_free_sgpr %d" % (68 if a.dbgtime else 66),
            "  .amdhsa_accum_offset %d" % (((a.vgpr or NVGPR) + 3) // 4 * 4), "  .amdhsa_group_segment_fixed_size 0",
            "  .amdhsa_kernarg_size 48", "  .amdhsa_user_sgpr_count 2", "  .amdhsa_user_sgpr_kernarg_segment_ptr 1",
            "  .amdhsa_system_sgpr_workgroup_id_x 1", "  .amdhsa_float_denorm_mode_32 3", ".end_amdhsa_kernel"]
    return "\n".join(out) + "\n", NWG, TH, LDS_BYTES


def stamp2(g, slot, counted):
    e = g.e
    e("s_memrealtime s[60:61]")
    e("s_waitcnt lgkmcnt(0)")
    e("v_mov_b32 v10, s60")
    e("v_mov_b32 v11, s61")
    e("s_add_u32 s62, s63, %d" % (slot * 8))
    e("s_mov_b64 exec, 1")
    e("buffer_store_dwordx2 v[10:11], off, s[12:15], s62")
    e("s_mov_b64 exec, -1")
    e("s_nop 1")


if __name__ == "__main__":
    p = argparse.ArgumentParser()
    p.add_argument("-o", default="standalone__groupnorm__prompt.s")
    p.add_argument("--threads", type=int, default=256)
    p.add_argument("--nr", type=int, default=9)
    p.add_argument("--ldflags", default=" nt")
    p.add_argument("--stflags", default="")
    p.add_argument("--remap", type=int, default=0)
    p.add_argument("--spin", type=int, default=20000)
    p.add_argument("--sleep", type=int, default=8)
    p.add_argument("--presleep", type=int, default=0)
    p.add_argument("--stamps", type=int, default=0)
    p.add_argument("--vgpr", type=int, default=0)
    p.add_argument("--lds", type=int, default=0)
    p.add_argument("--dbgtime", type=int, default=0)
    a = p.parse_args()
    txt, nwg, th, lds = build(a)
    if a.lds:
        txt = txt.replace("lds=%d" % lds, "lds=%d" % a.lds)
        lds = a.lds
    open(a.o, "w").write(txt)
    print(nwg, th, lds)
```
